```python
import torch

def _softmax(x, axis=-1):
    return torch.softmax(x, dim=axis)
def _gelu(x):
    return torch.nn.functional.gelu(x, approximate="tanh")
def _silu(x):
    return torch.nn.functional.silu(x)
def _sigmoid(x):
    return torch.sigmoid(x)
def _layernorm(x, axis=-1, eps=1e-5):
    m = x.mean(dim=axis, keepdim=True)
    v = x.var(dim=axis, keepdim=True, unbiased=False)
    return (x - m) / torch.sqrt(v + eps)
def _scatter_add(tgt, idx, src, axis=0):
    return tgt.clone().index_add_(axis, idx, src)
def _segment_sum(src, seg, n):
    out = torch.zeros((n,) + src.shape[1:], dtype=src.dtype)
    return out.index_add_(0, seg, src)
def _pad(x, pw):
    flat = tuple(v for pair in reversed(pw) for v in pair)
    return torch.nn.functional.pad(x, flat)

kernel_name = 'standalone__rezero__sampling'

def setup_inputs():

    _w = (lambda a: (lambda t: t.to(torch.bfloat16) if t.is_floating_point() else t)(torch.as_tensor(a)))
    B, S, D = 1024, 16, 448
    return {
        "x": _w((lambda *s: torch.randn(*s, dtype=torch.bfloat16) * 0.05)(B, S, D)),
        "fx": _w((lambda *s: torch.randn(*s, dtype=torch.bfloat16) * 0.8)(B, S, D)),
        "alpha": _w((lambda *s: torch.randn(*s, dtype=torch.bfloat16) * 0.8)(1) * 0.1),
    }

def reference(x, fx, alpha):
    return x + alpha * fx
```

```python
import sys, argparse

TOTAL = 1024*16*448*2

HEADER = """; Kernarg layout for this problem (48 bytes, ptrs only, base s[0:1]):
;   offset   0: d_in[0] x  shape=(1024, 16, 448) dtype=bfloat16 strides=(14336, 896, 2) contiguous=True
;   offset   8: d_in[1] fx  shape=(1024, 16, 448) dtype=bfloat16 strides=(14336, 896, 2) contiguous=True
;   offset  16: d_in[2] alpha  shape=(1,) dtype=bfloat16 strides=(2,) contiguous=True
"""

def compute_chunk(xs, fs, tmp, L):
    for i in range(4):
        f = fs+i; x = xs+i
        a = tmp + (i % 2)*4
        b = a + 2
        L.append(f"    v_lshlrev_b32 v{a}, 16, v{f}")
        L.append(f"    v_and_b32 v{a+1}, s14, v{f}")
        L.append(f"    v_pk_mul_f32 v[{a}:{a+1}], v[{a}:{a+1}], s[12:13]")
        L.append(f"    v_lshlrev_b32 v{b}, 16, v{x}")
        L.append(f"    v_and_b32 v{b+1}, s14, v{x}")
        L.append(f"    v_cvt_pk_bf16_f32 v{f}, v{a}, v{a+1}")
        L.append(f"    v_lshlrev_b32 v{a}, 16, v{f}")
        L.append(f"    v_and_b32 v{a+1}, s14, v{f}")
        L.append(f"    v_pk_add_f32 v[{b}:{b+1}], v[{b}:{b+1}], v[{a}:{a+1}]")
        L.append(f"    v_cvt_pk_bf16_f32 v{x}, v{b}, v{b+1}")

def gen(U=2, block=256, ld="", st="", mp="wg", stamp=False, ldx=None, ldf=None, endwait=False, vgpr=0, lds=0, D=0):
    if ldx is None: ldx = ld
    if ldf is None: ldf = ld
    per_wg = U*block*16
    assert TOTAL % per_wg == 0, (TOTAL, per_wg)
    nwg = TOTAL // per_wg
    wpb = block // 64
    L = []
    L.append(HEADER + f"; @launch grid=({nwg},1,1) block=({block},1,1) lds={lds}")
    L.append('.amdgcn_target "amdgcn-amd-amdhsa--gfx950"')
    L.append(".text")
    L.append(".globl standalone__rezero__sampling_kernel")
    L.append(".p2align 8")
    L.append(".type standalone__rezero__sampling_kernel,@function")
    L.append("standalone__rezero__sampling_kernel:")
    if stamp: L.append("    s_memrealtime s[20:21]")
    L.append("    s_load_dwordx4 s[4:7], s[0:1], 0        ; x, fx")
    L.append("    s_load_dwordx4 s[8:11], s[0:1], 16")
    if stamp: L.append("    s_load_dwordx2 s[30:31], s[0:1], 40      ; ws")
    L.append(f"    s_cmp_ge_u32 s2, {nwg}")
    L.append("    s_cbranch_scc1 L_done")
    if stamp: L.append("    v_mov_b32 v63, v0")
    wgreg = "s2"
    if mp in ("xcd", "xcdwave"):
        assert nwg % 8 == 0
        per = nwg // 8
        L.append("    s_and_b32 s15, s2, 7")
        L.append(f"    s_mul_i32 s15, s15, {per}")
        L.append("    s_lshr_b32 s3, s2, 3")
        L.append("    s_add_u32 s15, s15, s3")
        wgreg = "s15"
    if mp in ("wg", "xcd"):
        cstride = block*16
        L.append(f"    s_mul_i32 s3, {wgreg}, {per_wg}")
        L.append("    v_lshlrev_b32 v0, 4, v0")
        L.append("    v_add_u32 v0, s3, v0")
    elif mp in ("wave", "xcdwave"):
        cstride = 1024
        L.append(f"    s_mul_i32 s3, {wgreg}, {per_wg}")
        L.append("    v_lshrrev_b32 v1, 6, v0")
        L.append(f"    v_mul_u32_u24 v1, {U*1024}, v1")
        L.append("    v_and_b32 v0, 63, v0")
        L.append("    v_lshlrev_b32 v0, 4, v0")
        L.append("    v_add3_u32 v0, s3, v0, v1")
    elif mp == "pair":
        P = block*16
        cstride = 2*P
        L.append("    s_lshr_b32 s3, s2, 1")
        L.append(f"    s_mul_i32 s3, s3, {2*per_wg}")
        L.append("    s_and_b32 s15, s2, 1")
        L.append(f"    s_mul_i32 s15, s15, {P}")
        L.append("    s_add_u32 s3, s3, s15")
        L.append("    v_lshlrev_b32 v0, 4, v0")
        L.append("    v_add_u32 v0, s3, v0")
    elif mp == "stride":
        cstride = nwg*block*16
        L.append(f"    s_mul_i32 s3, s2, {block*16}")
        L.append("    v_lshlrev_b32 v0, 4, v0")
        L.append("    v_add_u32 v0, s3, v0")
    L.append("    s_waitcnt lgkmcnt(0)")
    if stamp: L.append("    s_memrealtime s[22:23]")
    win = {}
    aregs = []
    for j in range(U):
        off = j*cstride
        found = None
        for k, b in enumerate(aregs):
            if 0 <= off - b <= 4095: found = (k, off-b)
        if found is None:
            aregs.append(off); found = (len(aregs)-1, 0)
        win[j] = found
    na = len(aregs)
    data0 = (na + 1) & ~1
    tmp = data0 + U*8
    made = {0}
    if D <= 0 or D > U: D = U
    def issue_load(j):
        k, imm = win[j]
        if k not in made:
            L.append(f"    v_add_u32 v{k}, {aregs[k]}, v0")
            made.add(k)
        xs = data0 + j*8; fs = xs + 4
        o = f" offset:{imm}" if imm else ""
        L.append(f"    global_load_dwordx4 v[{fs}:{fs+3}], v{k}, s[6:7]{o} {ldf}".rstrip())
        L.append(f"    global_load_dwordx4 v[{xs}:{xs+3}], v{k}, s[4:5]{o} {ldx}".rstrip())
    for j in range(D):
        issue_load(j)
        if j == 0:
            L.append("    s_load_dword s12, s[8:9], 0")
    L.append("    s_mov_b32 s14, 0xffff0000")
    L.append("    s_waitcnt lgkmcnt(0)")
    L.append("    s_lshl_b32 s12, s12, 16")
    L.append("    s_mov_b32 s13, s12")
    for j in range(U):
        xs = data0 + j*8; fs = xs + 4
        n = 2*min(D-1, U-1-j) + min(j, D)
        L.append(f"    s_waitcnt vmcnt({min(n,63)})")
        if stamp and j == 0: L.append("    s_memrealtime s[24:25]")
        if stamp and j == U-1: L.append("    s_memrealtime s[26:27]")
        if j + D < U: issue_load(j + D)
        compute_chunk(xs, fs, tmp, L)
        k, imm = win[j]
        o = f" offset:{imm}" if imm else ""
        L.append(f"    global_store_dwordx4 v{k}, v[{xs}:{xs+3}], s[10:11]{o} {st}".rstrip())
    nv = tmp + 8
    if stamp:
        L.append("    s_waitcnt vmcnt(0)")
        L.append("    s_memrealtime s[28:29]")
        L.append("    s_getreg_b32 s3, hwreg(HW_REG_XCC_ID)")
        L.append("    s_getreg_b32 s15, hwreg(HW_REG_HW_ID)")
        L.append("    v_lshrrev_b32 v63, 6, v63")
        L.append(f"    v_mov_b32 v62, s2")
        L.append(f"    v_mul_u32_u24 v62, {wpb}, v62")
        L.append("    v_add_u32 v62, v62, v63")
        L.append("    v_lshlrev_b32 v62, 5, v62")
        L.append("    s_waitcnt lgkmcnt(0)")
        L.append("    v_mov_b32 v52, s20")
        L.append("    v_mov_b32 v53, s22")
        L.append("    v_mov_b32 v54, s24")
        L.append("    v_mov_b32 v55, s26")
        L.append("    v_mov_b32 v56, s28")
        L.append("    v_mov_b32 v57, s3")
        L.append("    v_mov_b32 v58, s15")
        L.append("    v_mov_b32 v59, s21")
        L.append("    s_mov_b64 exec, 1")
        L.append("    global_store_dwordx4 v62, v[52:55], s[30:31]")
        L.append("    global_store_dwordx4 v62, v[56:59], s[30:31] offset:16")
        nv = max(nv, 64)
    elif endwait:
        L.append("    s_waitcnt vmcnt(0)")
    nv = max(nv, vgpr)
    L.append("L_done:")
    L.append("    s_endpgm")
    L.append(f""".section .rodata,"a"
.p2align 6
.amdhsa_kernel standalone__rezero__sampling_kernel
  .amdhsa_next_free_vgpr {nv}
  .amdhsa_next_free_sgpr {32 if stamp else 16}
  .amdhsa_accum_offset {(nv+3)//4*4}
  .amdhsa_group_segment_fixed_size 0
  .amdhsa_kernarg_size 48
  .amdhsa_user_sgpr_count 2
  .amdhsa_user_sgpr_kernarg_segment_ptr 1
  .amdhsa_system_sgpr_workgroup_id_x 1
  .amdhsa_float_denorm_mode_32 3
.end_amdhsa_kernel""")
    return "\n".join(L) + "\n"

if __name__ == "__main__":
    ap = argparse.ArgumentParser()
    ap.add_argument("-U", type=int, default=2)
    ap.add_argument("-b", type=int, default=256)
    ap.add_argument("--ld", default="")
    ap.add_argument("--st", default="")
    ap.add_argument("--map", default="wg")
    ap.add_argument("--stamp", action="store_true")
    ap.add_argument("--vgpr", type=int, default=0)
    ap.add_argument("--lds", type=int, default=0)
    ap.add_argument("-o", default="-")
    a = ap.parse_args()
    s = gen(a.U, a.b, a.ld, a.st, a.map, a.stamp, vgpr=a.vgpr, lds=a.lds)
    if a.o == "-": sys.stdout.write(s)
    else: open(a.o, "w").write(s)
```

```python
import sys
from gen2 import HEADER
def gen(trigs=(), wb="buffer_wbl2 sc1", st="", ld="nt", stamp=False, allwaves=False, T=0, st2="sc1", early=False):
    L=[]; A=L.append
    A(HEADER + "; @launch grid=(1792,1,1) block=(256,1,1) lds=0")
    A('.amdgcn_target "amdgcn-amd-amdhsa--gfx950"')
    A(".text")
    A(".globl standalone__rezero__sampling_kernel")
    A(".p2align 8")
    A(".type standalone__rezero__sampling_kernel,@function")
    def REZ(f,x,a0,a1,b0,b1):
        A(f"    v_lshlrev_b32 v{a0}, 16, v{f}")
        A(f"    v_and_b32 v{a1}, s14, v{f}")
        A(f"    v_pk_mul_f32 v[{a0}:{a1}], v[{a0}:{a1}], s[12:13]")
        A(f"    v_lshlrev_b32 v{b0}, 16, v{x}")
        A(f"    v_and_b32 v{b1}, s14, v{x}")
        A(f"    v_cvt_pk_bf16_f32 v{f}, v{a0}, v{a1}")
        A(f"    v_lshlrev_b32 v{a0}, 16, v{f}")
        A(f"    v_and_b32 v{a1}, s14, v{f}")
        A(f"    v_pk_add_f32 v[{b0}:{b1}], v[{b0}:{b1}], v[{a0}:{a1}]")
        A(f"    v_cvt_pk_bf16_f32 v{x}, v{b0}, v{b1}")
    A("standalone__rezero__sampling_kernel:")
    if stamp: A("    s_memrealtime s[20:21]")
    A("    s_load_dwordx8 s[4:11], s[0:1], 0")
    if stamp: A("    s_load_dwordx2 s[30:31], s[0:1], 40")
    A("    s_cmpk_ge_u32 s2, 1792")
    A("    s_cbranch_scc1 L_done")
    A("    s_lshl_b32 s3, s2, 13")
    A("    v_and_b32 v1, 0xc0, v0")
    if stamp: A("    v_mov_b32 v63, v0")
    A("    v_add_lshl_u32 v0, v0, v1, 4")
    A("    v_add_u32 v0, s3, v0")
    A("    s_mov_b32 s14, 0xffff0000")
    A("    v_readfirstlane_b32 s15, v1            ; wave*64")
    A("    s_waitcnt lgkmcnt(0)")
    if stamp: A("    s_memrealtime s[22:23]")
    A(f"    global_load_dwordx4 v[6:9], v0, s[6:7] {ld}")
    A(f"    global_load_dwordx4 v[2:5], v0, s[4:5] {ld}")
    A("    s_load_dword s12, s[8:9], 0")
    A(f"    global_load_dwordx4 v[14:17], v0, s[6:7] offset:1024 {ld}")
    A(f"    global_load_dwordx4 v[10:13], v0, s[4:5] offset:1024 {ld}")
    A("    s_waitcnt lgkmcnt(0)")
    A("    s_lshl_b32 s12, s12, 16")
    A("    s_mov_b32 s13, s12")
    A("    s_waitcnt vmcnt(2)")
    if stamp: A("    s_memrealtime s[24:25]")
    REZ(6,2,18,19,20,21); REZ(7,3,22,23,24,25); REZ(8,4,18,19,20,21); REZ(9,5,22,23,24,25)
    def STORE(regs, off, lab):
        if not T:
            A(f"    global_store_dwordx4 v0, {regs}, s[10:11]{off} {st}"); return
        A(f"    s_cmpk_ge_u32 s2, {T}")
        A(f"    s_cbranch_scc{0 if early else 1} L_alt{lab}")
        A(f"    global_store_dwordx4 v0, {regs}, s[10:11]{off} {st}")
        A(f"    s_branch L_join{lab}")
        A(f"L_alt{lab}:")
        A(f"    global_store_dwordx4 v0, {regs}, s[10:11]{off} {st2}")
        A(f"L_join{lab}:")
    STORE("v[2:5]", "", 0)
    A("    s_waitcnt vmcnt(1)")
    if stamp: A("    s_memrealtime s[26:27]")
    REZ(14,10,18,19,20,21); REZ(15,11,22,23,24,25); REZ(16,12,18,19,20,21); REZ(17,13,22,23,24,25)
    STORE("v[10:13]", " offset:1024", 1)
    if trigs:
        A("    s_lshr_b32 s3, s2, 3")
        if not allwaves:
            A("    s_cmp_lg_u32 s15, 0")
            A("    s_cbranch_scc1 L_nowb")
        for t in trigs:
            A(f"    s_cmpk_eq_u32 s3, {t}")
            A("    s_cbranch_scc1 L_wb")
        A("    s_branch L_nowb")
        A("L_wb:")
        A("    s_waitcnt vmcnt(0)")
        A(f"    {wb}")
        A("L_nowb:")
    nv = 26
    if stamp:
        A("    s_waitcnt vmcnt(0)")
        A("    s_memrealtime s[28:29]")
        A("    s_getreg_b32 s3, hwreg(HW_REG_XCC_ID)")
        A("    s_getreg_b32 s15, hwreg(HW_REG_HW_ID)")
        A("    v_lshrrev_b32 v63, 6, v63")
        A("    v_mov_b32 v62, s2")
        A("    v_mul_u32_u24 v62, 4, v62")
        A("    v_add_u32 v62, v62, v63")
        A("    v_lshlrev_b32 v62, 5, v62")
        A("    s_waitcnt lgkmcnt(0)")
        for i,s in enumerate(["s20","s22","s24","s26","s28","s3","s15","s21"]): A(f"    v_mov_b32 v{52+i}, {s}")
        A("    s_mov_b64 exec, 1")
        A("    global_store_dwordx4 v62, v[52:55], s[30:31]")
        A("    global_store_dwordx4 v62, v[56:59], s[30:31] offset:16")
        nv = 64
    A("L_done:")
    A("    s_endpgm")
    A(f""".section .rodata,"a"
.p2align 6
.amdhsa_kernel standalone__rezero__sampling_kernel
  .amdhsa_next_free_vgpr {nv}
  .amdhsa_next_free_sgpr {32 if stamp else 16}
  .amdhsa_accum_offset {(nv+3)//4*4}
  .amdhsa_group_segment_fixed_size 0
  .amdhsa_kernarg_size 48
  .amdhsa_user_sgpr_count 2
  .amdhsa_user_sgpr_kernarg_segment_ptr 1
  .amdhsa_system_sgpr_workgroup_id_x 1
  .amdhsa_float_denorm_mode_32 3
.end_amdhsa_kernel""")
    return "\n".join(l.rstrip() for l in L) + "\n"
if __name__ == "__main__":
    import subprocess, json
    names=[]
    for spec in sys.argv[1:]:
        name,_,kv = spec.partition(":")
        kw={}
        for item in filter(None, kv.split(",")):
            k,v=item.split("=")
            if k=="trigs": v=tuple(int(x) for x in v.split("+") if x)
            elif k in("stamp","allwaves","early"): v=bool(int(v))
            elif k=="T": v=int(v)
            else: v=v.replace("+"," ")
            kw[k]=v
        open(f"../v/{name}.s","w").write(gen(**kw)); names.append(f"../v/{name}.s")
    out=subprocess.run(["python3","../bench/mkco.py"]+names,capture_output=True,text=True)
    print(out.stdout.strip()); print(out.stderr)
    print(json.dumps(["bench/bench"]+[n[3:-2]+".co" for n in names]))
```
